```python
import torch

def _softmax(x, axis=-1):
    return torch.softmax(x, dim=axis)
def _gelu(x):
    return torch.nn.functional.gelu(x, approximate="tanh")
def _silu(x):
    return torch.nn.functional.silu(x)
def _sigmoid(x):
    return torch.sigmoid(x)
def _layernorm(x, axis=-1, eps=1e-5):
    m = x.mean(dim=axis, keepdim=True)
    v = x.var(dim=axis, keepdim=True, unbiased=False)
    return (x - m) / torch.sqrt(v + eps)
def _scatter_add(tgt, idx, src, axis=0):
    return tgt.clone().index_add_(axis, idx, src)
def _segment_sum(src, seg, n):
    out = torch.zeros((n,) + src.shape[1:], dtype=src.dtype)
    return out.index_add_(0, seg, src)
def _pad(x, pw):
    flat = tuple(v for pair in reversed(pw) for v in pair)
    return torch.nn.functional.pad(x, flat)

kernel_name = 'concat_heads__mha_block__ssm_conv_s4__prompt'

def setup_inputs():

    _w = (lambda a: (lambda t: t.to(torch.bfloat16) if t.is_floating_point() else t)(torch.as_tensor(a)))
    def _A_setup():
        B, S, D, H = 1, 2048, 640, 32
        return {
            "x": _w((lambda *s: torch.randn(*s, dtype=torch.bfloat16) * 0.2)(B, S, D)),
            "wqkv": _w((lambda *s: torch.randn(*s, dtype=torch.bfloat16) * 0.2)(D, 3 * D)),
            "wo": _w((lambda *s: torch.randn(*s, dtype=torch.bfloat16) * 0.05)(D, D)),
        }
    _A_in = _A_setup()

    def _B_setup():
        B, L, D, N = 1, 2048, 640, 128
        A_re = -(lambda _x: torch.exp(torch.as_tensor(_x)))((lambda *s: torch.randn(*s, dtype=torch.bfloat16) * 3.2)(D, N))
        A_im = torch.pi * (lambda *s: torch.randn(*s, dtype=torch.bfloat16) * 0.1)(D, N)
        B_re = (lambda *s: torch.randn(*s, dtype=torch.bfloat16) * 0.4)(D, N)
        B_im = (lambda *s: torch.randn(*s, dtype=torch.bfloat16) * 0.4)(D, N)
        C_re = (lambda *s: torch.randn(*s, dtype=torch.bfloat16) * 0.4)(D, N)
        C_im = (lambda *s: torch.randn(*s, dtype=torch.bfloat16) * 0.4)(D, N)
        log_dt = (lambda *s: torch.randn(*s, dtype=torch.bfloat16) * 0.1)(D) * 0.5 - 4.0
        Dskip = (lambda *s: torch.randn(*s, dtype=torch.bfloat16) * 0.2)(D)
        return {
            "u": _w((lambda *s: torch.randn(*s, dtype=torch.bfloat16) * 0.05)(B, L, D)),
            "A_re": _w(A_re),
            "A_im": _w(A_im),
            "B_re": _w(B_re),
            "B_im": _w(B_im),
            "C_re": _w(C_re),
            "C_im": _w(C_im),
            "log_dt": _w(log_dt),
            "Dskip": _w(Dskip),
        }
    _B_in = _B_setup()

    return {
        "A_x": _A_in["x"],
        "A_wqkv": _A_in["wqkv"],
        "A_wo": _A_in["wo"],
        "B_u": _B_in["u"],
        "B_A_re": _B_in["A_re"],
        "B_A_im": _B_in["A_im"],
        "B_B_re": _B_in["B_re"],
        "B_B_im": _B_in["B_im"],
        "B_C_re": _B_in["C_re"],
        "B_C_im": _B_in["C_im"],
        "B_log_dt": _B_in["log_dt"],
        "B_Dskip": _B_in["Dskip"],
    }

def reference(A_x, A_wqkv, A_wo, B_u, B_A_re, B_A_im, B_B_re, B_B_im, B_C_re, B_C_im, B_log_dt, B_Dskip):
    def _A_ref(x, wqkv, wo):
        B, S, D = x.shape
        H = 32
        Dh = D // H
        qkv = (lambda x, *d: x.permute(*d))((x @ wqkv).reshape(B, S, 3, H, Dh), 2, 0, 3, 1, 4)
        q, k, v = qkv[0], qkv[1], qkv[2]
        scores = torch.einsum("bhqd,bhkd->bhqk", q, k) * (Dh ** -0.5)
        p = _softmax(scores, axis=-1)
        o = torch.einsum("bhqk,bhkd->bhqd", p, v)
        return (lambda x, *d: x.permute(*d))(o, 0, 2, 1, 3).reshape(B, S, D) @ wo

    def _B_ref(u, A_re, A_im, B_re, B_im, C_re, C_im, log_dt, Dskip):
        Bsz, L, D = u.shape
        dt = torch.exp(log_dt)[:, None]
        A = A_re + 1j * A_im
        Bc = B_re + 1j * B_im
        Cc = C_re + 1j * C_im
        logdA = dt * A
        dB = dt * Bc
        l = (lambda x, dt: x.to(dt))(torch.arange(L), A_re.dtype)
        P = torch.exp(logdA[:, :, None] * l[None, None, :])
        K = torch.einsum("dn,dnl,dn->dl", Cc, P, dB).real
        L2 = 2 * L
        Kp = _pad(K, ((0, 0), (0, L)))
        up = (lambda x, *d: x.permute(*d))(u, 0, 2, 1)
        up = _pad(up, ((0, 0), (0, 0), (0, L)))
        Kf = (lambda x, axes=(-2,-1): torch.fft.rfft2(x.float(), dim=axes))(Kp[:, None, :], axes=(-2, -1))
        Uf = (lambda x, axes=(-2,-1): torch.fft.rfft2(x.float(), dim=axes))(up[:, :, None, :], axes=(-2, -1))
        Yf = Uf * Kf[None, :, :, :]
        y = (lambda x, s, axes=(-2,-1): torch.fft.irfft2(x, s=s, dim=axes).to(torch.bfloat16))(Yf, (1, L2), axes=(-2, -1))[:, :, 0, :L]
        y = (lambda x, *d: x.permute(*d))(y, 0, 2, 1) + u * Dskip[None, None, :]
        return y

    a = _A_ref(A_x, A_wqkv, A_wo)
    b = _B_ref(B_u, B_A_re, B_A_im, B_B_re, B_B_im, B_C_re, B_C_im, B_log_dt, B_Dskip)
    return torch.concatenate([a, b], axis=-1)
```

```python
import re

TRANS = ("v_exp_", "v_log_", "v_rcp_", "v_rsq_", "v_sqrt_", "v_sin_", "v_cos_")

def regs_of(tok):
    tok = tok.strip()
    neg = tok.lstrip("-|").rstrip("|")
    m = re.fullmatch(r"(?:neg\(|abs\()?([vsa])\[(\d+):(\d+)\]\)?", neg)
    if m:
        return {(m.group(1), i) for i in range(int(m.group(2)), int(m.group(3)) + 1)}
    m = re.fullmatch(r"(?:neg\(|abs\()?([vsa])(\d+)\)?", neg)
    if m:
        return {(m.group(1), int(m.group(2)))}
    if neg in ("vcc",): return {("s", "vcc_lo"), ("s", "vcc_hi")}
    if neg in ("vcc_lo", "vcc_hi"): return {("s", neg)}
    if neg == "exec": return {("s", "exec_lo"), ("s", "exec_hi")}
    if neg in ("exec_lo", "exec_hi"): return {("s", neg)}
    if neg == "m0": return {("s", "m0")}
    return set()

VCC = {("s", "vcc_lo"), ("s", "vcc_hi")}
EXEC = {("s", "exec_lo"), ("s", "exec_hi")}

class Ins:
    __slots__ = ("text", "op", "ops", "mods", "defs", "uses", "kind", "passes", "srcc", "ab", "label", "target", "states", "line")
    def __init__(self, text):
        self.text = text
        self.label = None; self.target = None
        self.defs = set(); self.uses = set(); self.kind = "none"; self.passes = 0
        self.srcc = set(); self.ab = set(); self.states = 0
        t = text.split(";")[0].strip()
        if not t: self.op = ""; return
        if t.endswith(":"):
            self.label = t[:-1]; self.op = ""; return
        if t.startswith("."): self.op = ""; return
        sp = t.split(None, 1)
        op = self.op = sp[0]
        rest = sp[1] if len(sp) > 1 else ""
        parts = []; cur = ""; d = 0
        for ch in rest:
            if ch in "[(": d += 1
            if ch in "])": d -= 1
            if ch == "," and d == 0: parts.append(cur.strip()); cur = ""
            else: cur += ch
        if cur.strip(): parts.append(cur.strip())
        mods = []
        if parts:
            last = parts[-1].split()
            parts[-1] = last[0]; mods = last[1:]
        self.ops = parts; self.mods = mods
        self.states = 1
        R = [regs_of(p) for p in parts]
        U = lambda idxs: set().union(*[R[i] for i in idxs if i < len(R)]) if idxs else set()
        n = len(parts)
        if op == "s_nop":
            self.kind = "nop"; self.states = int(parts[0], 0) + 1
        elif op.startswith("v_mfma") or op.startswith("v_smfmac"):
            self.kind = "mfma"
            self.passes = 8 if "32x32" in op else 4
            if "4x4" in op: self.passes = 2
            self.defs = R[0]
            if op.startswith("v_smfmac"):
                self.srcc = R[0]; self.ab = U([1, 2, 3])
            else:
                self.srcc = R[3]; self.ab = U([1, 2])
            self.uses = self.srcc | self.ab
        elif op.startswith("v_"):
            self.kind = "trans" if op.startswith(TRANS) else "valu"
            if op.startswith("v_cmpx"):
                self.defs = set(EXEC) | (R[0] if n == 3 else set()); self.uses = U(range(1 if n == 3 else 0, n))
            elif op.startswith("v_cmp"):
                self.defs = R[0]; self.uses = U(range(1, n))
            elif op.startswith(("v_add_co", "v_sub_co", "v_subrev_co", "v_addc_co", "v_subb_co", "v_mad_u64", "v_div_scale")):
                self.defs = R[0] | R[1]; self.uses = U(range(2, n))
            elif op.startswith(("v_permlane32_swap", "v_permlane16_swap", "v_swap")):
                self.defs = R[0] | R[1]; self.uses = R[0] | R[1]
            elif op == "v_nop":
                self.kind = "nop"
            else:
                self.defs = R[0]; self.uses = U(range(1, n))
                if op.startswith(("v_fmac", "v_mac", "v_pk_fmac", "v_dot2c", "v_writelane")) or "dst_unused:UNUSED_PRESERVE" in mods or any(m.startswith("op_sel") for m in mods) and op.startswith("v_cvt"):
                    self.uses |= R[0]
                if op.startswith("v_cndmask") and n == 3: self.uses |= VCC
            if "dpp" in op or any(m.startswith(("row_", "quad_perm", "wave_")) for m in mods):
                self.uses |= R[0]
        elif op.startswith("ds_"):
            self.kind = "ds"
            if op.startswith(("ds_read", "ds_bpermute", "ds_permute", "ds_swizzle")) or "_rtn" in op:
                self.defs = R[0]; self.uses = U(range(1, n))
            else:
                self.uses = U(range(n))
            if "addtid" in op: self.uses |= {("s", "m0")}
        elif op.startswith("buffer_"):
            self.kind = "vmem"
            if "lds" in mods:
                self.uses = U(range(n)) | {("s", "m0")}
            elif op.startswith("buffer_load"):
                self.defs = R[0]; self.uses = U(range(1, n))
            elif op.startswith("buffer_atomic") and "sc0" in mods:
                self.defs = R[0]; self.uses = U(range(n))
            else:
                self.uses = U(range(n))
        elif op.startswith("global_"):
            self.kind = "vmem"
            if op.startswith("global_load_lds"):
                self.uses = U(range(n)) | {("s", "m0")}
            elif op.startswith("global_load") or (op.startswith("global_atomic") and "sc0" in mods):
                self.defs = R[0]; self.uses = U(range(1, n))
            else:
                self.uses = U(range(n))
        elif op.startswith(("s_load", "s_buffer_load", "s_memtime", "s_memrealtime")):
            self.kind = "smem"; self.defs = R[0]; self.uses = U(range(1, n))
        elif op.startswith("s_"):
            self.kind = "salu"
            if op.startswith(("s_cbranch", "s_branch")):
                self.target = parts[0]; self.kind = "branch"
            elif op.startswith(("s_cmp", "s_bitcmp", "s_waitcnt", "s_barrier", "s_endpgm", "s_setprio", "s_sleep", "s_setreg", "s_sendmsg")):
                self.uses = U(range(n))
            else:
                self.defs = R[0]; self.uses = U(range(1, n))
                if "saveexec" in op: self.defs |= EXEC; self.uses |= EXEC
        else:
            raise ValueError("unknown op " + text)

    def isvalu(self): return self.kind in ("valu", "trans")

def vonly(s): return {r for r in s if r[0] in "va"}
def sonly(s): return {r for r in s if r[0] == "s"}

def need(p, c):
    w = 0
    if p.kind == "mfma":
        tab = {2: 0, 4: 1, 8: 2, 16: 3}[p.passes]
        if c.kind == "mfma":
            if c.srcc & p.defs:
                if c.srcc == p.defs and c.passes == p.passes: w = max(w, (2, 0, 0, 0)[tab])
                else: w = max(w, (4, 6, 10, 18)[tab])
            if c.ab & p.defs: w = max(w, (5, 8, 12, 20)[tab])
            if (c.defs & p.defs) and not (c.srcc & p.defs) and c.passes < p.passes: w = max(w, (4, 6, 10, 18)[tab])
        elif c.isvalu() or c.kind in ("ds", "vmem"):
            if (c.uses | c.defs) & p.defs: w = max(w, (5, 8, 12, 20)[tab])
            if c.isvalu() and (c.defs & p.srcc): w = max(w, (1, 3, 7, 15)[tab])
            if c.kind in ("ds", "vmem") and (c.defs & p.srcc): w = max(w, (1, 3, 7, 15)[tab])
    if p.isvalu():
        vd = vonly(p.defs); sd = sonly(p.defs)
        if c.kind == "mfma":
            if c.uses & vd: w = max(w, 2)
            if sd & EXEC: w = max(w, 4)
        if c.kind == "vmem" and (c.uses & sd): w = max(w, 5)
        if c.isvalu():
            if c.uses & sd:
                w = max(w, 4 if c.op.startswith(("v_readlane", "v_writelane", "v_div_fmas")) else 2)
            if (sd & EXEC) and c.op.startswith(("v_readlane", "v_readfirstlane", "v_writelane", "v_permlane")): w = max(w, 4)
            if c.op.startswith(("v_readlane", "v_readfirstlane")) and (c.uses & vd): w = max(w, 1)
            if c.op.startswith("v_permlane") and (c.uses & vd): w = max(w, 2)
            isdpp = "dpp" in c.op or any(m.startswith(("row_", "quad_perm", "wave_")) for m in c.mods)
            if isdpp and (c.uses & vd): w = max(w, 2)
            if isdpp and (sd & EXEC): w = max(w, 5)
            if p.kind == "trans" and c.kind != "trans" and (c.uses & vd): w = max(w, 1)
            if ("sdwa" in p.op or any(m.startswith(("dst_sel", "op_sel")) for m in p.mods)) and not p.op.startswith("v_pk_") and ((c.uses | c.defs) & vd): w = max(w, 1)
        if p.kind == "trans" and c.kind in ("ds", "vmem") and (c.uses & vd): w = max(w, 1)
        if c.kind in ("salu", "branch", "smem") and (c.uses & sd): w = max(w, 1)
        if c.kind == "branch" and ("vccz" in c.op or "vccnz" in c.op) and (sd & VCC): w = max(w, 5)
        if c.kind == "branch" and "exec" in c.op and (sd & EXEC): w = max(w, 5)
    if p.kind == "vmem" and re.search(r"store_dwordx[34]|cmpswap_x2", p.op):
        data = regs_of(p.ops[0]) if p.op.startswith("buffer") else regs_of(p.ops[1])
        if c.defs & data: w = max(w, 2 if c.isvalu() or c.kind == "mfma" else 1)
    if p.kind == "ds" and re.search(r"write_b(96|128)|write2_b64", p.op):
        data = set().union(*[regs_of(o) for o in p.ops[1:]])
        if c.defs & data: w = max(w, 1)
    if p.kind == "salu" and ("s", "m0") in p.defs and ("s", "m0") in c.uses and c.kind in ("vmem", "ds"): w = max(w, 1)
    return w

class Asm:
    def __init__(self):
        self.lines = []
    def __call__(self, s):
        for l in s.split("\n"):
            l = l.strip()
            if l: self.lines.append(l)
    def label(self, n): self.lines.append(n + ":")
    def c(self, s): self.lines.append("; " + s)

    def fix(self, verbose=False):
        ins = [Ins(l) for l in self.lines]
        total = 0
        for _ in range(50):
            labels = {x.label: i for i, x in enumerate(ins) if x.label}
            fixes = {}
            for i, p in enumerate(ins):
                if p.kind not in ("mfma", "valu", "trans", "vmem", "salu", "ds"): continue
                if p.kind == "salu" and ("s", "m0") not in p.defs: continue
                maxd = 20 if p.kind == "mfma" else 5
                stack = [(i + 1, 0)]; seen = {}
                while stack:
                    j, d = stack.pop()
                    while j < len(ins) and d < maxd:
                        if seen.get(j, 99) <= d: break
                        seen[j] = d
                        c = ins[j]
                        if c.states:
                            w = need(p, c)
                            d += fixes.get(j, 0)
                            if w > d:
                                fixes[j] = fixes.get(j, 0) + w - d
                                if verbose: print(f"hazard {w}-{d}: {p.text}  ->  {c.text}")
                                d = w
                            d += c.states
                            if c.op == "s_endpgm": break
                            if c.kind == "branch":
                                if c.target in labels: stack.append((labels[c.target], d))
                                if c.op == "s_branch": break
                        j += 1
            if not fixes: break
            new = []
            for j, x in enumerate(ins):
                if j in fixes:
                    k = fixes[j]; total += k
                    while k > 0:
                        q = min(k, 16); new.append(Ins(f"s_nop {q-1}")); k -= q
                new.append(x)
            ins = new
            verbose_once = False
        self.ins = ins
        self.nop_states = total
        return ins

    def check_waits(self):
        ins = self.ins
        labels = {x.label: i for i, x in enumerate(ins) if x.label}
        errs = []
        vm = []; lg = []
        taken = {}; snap = {}; dead = False
        i = 0; steps = 0
        while i < len(ins) and steps < 2000000:
            steps += 1
            x = ins[i]
            if x.label and dead:
                dead = False
                vm, lg = [list(q) for q in snap.get(x.label, ([], []))]
            if x.op == "s_waitcnt":
                t = x.text
                m = re.search(r"vmcnt\((\d+)\)", t)
                if m:
                    k = int(m.group(1)); vm = vm[len(vm) - k:] if k < len(vm) else vm
                    if k == 0: vm = []
                m = re.search(r"lgkmcnt\((\d+)\)", t)
                if m:
                    k = int(m.group(1))
                    if k == 0: lg = []
                    else:
                        dsl = [e for e in lg if e[2] == "ds"]
                        lg = [e for e in lg if e[2] == "smem"] + (dsl[len(dsl) - k:] if k < len(dsl) else dsl)
            elif x.states:
                touched = x.uses | x.defs
                for q in (vm, lg):
                    for d, t, kd in q:
                        if d & touched:
                            if not (d & x.uses) and x.kind == kd and (kd in ("ds",) or "d16" in x.op): continue
                            errs.append(f"pending {t!r} touched by {x.text!r}")
                if x.kind == "vmem": vm.append((x.defs, x.text, "vmem"))
                elif x.kind == "ds": lg.append((x.defs, x.text, "ds"))
                elif x.kind == "smem": lg.append((x.defs, x.text, "smem"))
                if len(vm) > 64: errs.append(f"vmcnt overflow at {x.text}"); vm = vm[-63:]
                if x.op == "s_endpgm": vm = []; lg = []
                if x.kind == "branch" and x.target in labels:
                    tgt = labels[x.target]
                    if tgt < i and not taken.get(i):
                        taken[i] = True; i = tgt; continue
                    if tgt > i: snap.setdefault(x.target, (list(vm), list(lg)))
                if x.op in ("s_branch", "s_endpgm"): dead = True
            i += 1
        return sorted(set(errs))

    def text(self):
        out = []
        for x in self.ins:
            out.append(x.text if (x.label or x.text.startswith(".")) else "    " + x.text)
        return "\n".join(out) + "\n"
```

```python
import sys, os
sys.path.insert(0, os.path.dirname(__file__))
from asmlib import Asm
from layout import *

NAME = "concat_heads__mha_block__ssm_conv_s4__prompt"

def vr(b, n=1): return f"v{b}" if n == 1 else f"v[{b}:{b+n-1}]"
def sr(b, n=1): return f"s{b}" if n == 1 else f"s[{b}:{b+n-1}]"

def srd(a, dst, ptr, nrec):
    a(f"s_mov_b32 s{dst}, s{ptr}")
    a(f"s_mov_b32 s{dst+1}, s{ptr+1}")
    a(f"s_mov_b32 s{dst+2}, {nrec:#x}")
    a(f"s_mov_b32 s{dst+3}, 0x00020000")

PROF = "prof" in sys.argv
def ARG(k, d):
    for x in sys.argv:
        if x.startswith(k + "="): return x[len(k)+1:]
    return d
def prof_stamp(a, k):
    if PROF:
        a(f"s_memtime s[{84+4*k}:{85+4*k}]")
        a(f"s_memrealtime s[{86+4*k}:{87+4*k}]")
def prof_start(a):
    if PROF:
        for k in range(88, 96): a(f"s_mov_b32 s{k}, 0")
    prof_stamp(a, 0)
def prof_mark(a, k): prof_stamp(a, k + 1)
def prof_end(a, kidx, ws=4):
    if not PROF: return
    a("s_waitcnt vmcnt(0) lgkmcnt(0)")
    prof_stamp(a, 3)
    a(f"""
    s_mov_b32 s80, s{ws}
    s_mov_b32 s81, s{ws+1}
    s_mov_b32 s82, {WS_END:#x}
    s_mov_b32 s83, 0x00020000
    v_lshrrev_b32 v1, 6, v0
    v_lshlrev_b32 v1, 6, v1
    s_lshl_b32 s79, s2, 10
    s_add_u32 s79, s79, {WS_PROF + kidx*0x80000}
    s_waitcnt lgkmcnt(0)
    """)
    for i in range(16): a(f"v_mov_b32 v{4+i}, s{84+i}")
    a("s_mov_b64 exec, 1")
    for i in range(4): a(f"buffer_store_dwordx4 v[{4+4*i}:{7+4*i}], v1, s[80:83], s79 offen offset:{16*i}")

import struct, math
def f32(x): return "0x%08x" % struct.unpack("<I", struct.pack("<f", x))[0]
QSCALE = 1.4426950408889634 / math.sqrt(20.0)
NSLOT = 3
KG_LDS = NSLOT * 32768
KG_SZ = 32*528

def gemm(a):
    ACC = 96
    XF = [[64, 68], [72, 76]]
    WF = [[80, 84], [88, 92]]
    vx = [8, 9, 10, 11]; vw = [12, 13, 14, 15]
    ax = [[16, 17, 18, 19], [20, 21, 22, 23]]
    aw = [[24, 25], [26, 27]]
    SA = [28, 29, 30, 31]
    SD = [32, 33, 34, 35]
    T = 40
    LN = 2; HF = 3; L31 = 4
    sW = 16; sRt = 17; sCt = 18; sX = 19; sWb = 20; sKc = 21; sM0 = 22; sT = 24; sXo = 30; sWo = 31; sScale = 32; sSt = 33
    a(f"""
    v_lshrrev_b32 v{HF}, 5, v{LN}
    v_and_b32 v{L31}, 31, v{LN}
    """)
    a(f"""
    v_and_b32 v{T}, 0x13, v{L31}
    v_bfe_u32 v{T+1}, v{L31}, 2, 1
    v_lshl_or_b32 v{T}, v{T+1}, 3, v{T}
    v_bfe_u32 v{T+1}, v{L31}, 3, 1
    v_lshl_or_b32 v{T}, v{T+1}, 2, v{T}
    s_and_b32 s{sT}, s{sW}, 1
    s_lshr_b32 s{sT+1}, s{sW}, 1
    s_lshl_b32 s{sT+2}, s{sT}, 13
    v_lshl_add_u32 v{T+1}, v{T}, 7, s{sT+2}
    v_bfe_u32 v{T+2}, v{T}, 1, 3
    v_xor_b32 v{T+2}, v{T+2}, v{HF}
    """)
    for ks in range(4):
        a(f"v_xor_b32 v{T+3}, {2*ks}, v{T+2}")
        a(f"v_lshl_add_u32 v{ax[0][ks]}, v{T+3}, 4, v{T+1}")
        a(f"v_add_u32 v{ax[1][ks]}, 0x10000, v{ax[0][ks]}")
    a(f"""
    v_bfe_u32 v{T+1}, v{LN}, 2, 2
    v_lshl_add_u32 v{T+2}, v{HF}, 3, v{T+1}
    v_lshlrev_b32 v{T+2}, 8, v{T+2}
    v_bfe_u32 v{T+3}, v{LN}, 4, 1
    v_lshl_add_u32 v{T+2}, v{T+3}, 5, v{T+2}
    v_and_b32 v{T+3}, 1, v{LN}
    v_lshl_add_u32 v{T+2}, v{T+3}, 4, v{T+2}
    v_bfe_u32 v{T+3}, v{LN}, 1, 1
    v_lshl_add_u32 v{T+2}, v{T+3}, 3, v{T+2}
    s_lshl_b32 s{sT+2}, s{sT+1}, 1
    v_xor_b32 v{T+3}, s{sT+2}, v{T+1}
    v_lshl_add_u32 v{aw[0][0]}, v{T+3}, 6, v{T+2}
    v_xor_b32 v{aw[0][1]}, 64, v{aw[0][0]}
    v_add_u32 v{aw[1][0]}, 0x10000, v{aw[0][0]}
    v_add_u32 v{aw[1][1]}, 0x10000, v{aw[0][1]}
    s_cmp_ge_u32 s{sCt}, 10
    s_cbranch_scc1 G_vsetup
    """)
    a(f"""
    s_cmp_ge_u32 s{sCt}, 5
    s_cselect_b32 s{sT+2}, 5, 0
    s_cselect_b32 s{sT+3}, 1, 0
    s_cselect_b32 s{sSt}, {WS_KV}, {WS_Q}
    s_cselect_b32 s{sScale}, 1.0, {f32(QSCALE)}
    s_lshl_b32 s{sT+3}, 1536, s{sT+3}
    s_sub_u32 s{sT+2}, s{sCt}, s{sT+2}
    s_lshl_b32 s{sT+2}, s{sT+2}, 4
    s_lshl_b32 s{sT+4}, s{sT+1}, 3
    s_add_u32 s{sT+2}, s{sT+2}, s{sT+4}
    s_lshl_b32 s{sT+4}, s{sRt}, 2
    s_lshl_b32 s{sT+5}, s{sT}, 1
    s_add_u32 s{sT+4}, s{sT+4}, s{sT+5}
    s_mul_i32 s{sT+4}, s{sT+4}, s{sT+3}
    s_add_u32 s{sSt}, s{sSt}, s{sT+4}
    s_add_u32 s{sT+5}, s{sSt}, s{sT+3}
    s_lshl_b32 s{sT+3}, s{sT+3}, 6
    v_lshlrev_b32 v{T+1}, 4, v{T}
    """)
    for i in range(4):
        a(f"""
        v_add_u32 v{T+2}, s{sT+2}, v{HF}
        v_add_u32 v{T+2}, {2*i}, v{T+2}
        v_mul_u32_u24 v{T+3}, 205, v{T+2}
        v_lshrrev_b32 v{T+3}, 10, v{T+3}
        v_mul_u32_u24 v{T+4}, 5, v{T+3}
        v_sub_u32 v{T+4}, v{T+2}, v{T+4}
        v_cmp_lt_u32 vcc, 2, v{T+4}
        v_cmp_eq_u32 s[{40+2*i}:{41+2*i}], 2, v{T+4}
        v_lshlrev_b32 v{T+3}, 1, v{T+3}
        v_cndmask_b32 v{T+5}, 0, 1, vcc
        v_add_u32 v{T+3}, v{T+3}, v{T+5}
        v_mul_u32_u24 v{T+5}, 3, v{T+5}
        v_sub_u32 v{T+4}, v{T+4}, v{T+5}
        v_mul_lo_u32 v{T+3}, v{T+3}, s{sT+3}
        v_lshl_add_u32 v{T+3}, v{T+4}, 9, v{T+3}
        v_add_u32 v{SA[i]}, v{T+3}, v{T+1}
        v_add_u32 v{SD[i]}, s{sT+3}, v{SA[i]}
        """)
    def mainloop(tag, vmode):
        def rd(st, ks, buf):
            slot = (st % NSLOT) * 32768; hi = slot >> 16; off = slot & 0xffff
            for mi in range(2):
                a(f"ds_read_b128 {vr(XF[buf][mi],4)}, v{ax[hi][ks]} offset:{off + mi*4096}")
            for ni in range(2):
                for h in range(2):
                    a(f"ds_read_b64_tr_b16 {vr(WF[buf][ni]+2*h,2)}, v{aw[hi][ni]} offset:{off + 16384 + ks*4096 + h*1024}")
        def mm(buf, first):
            for ni in range(2):
                for mi in range(2):
                    acc = vr(ACC + 16*(ni*2+mi), 16)
                    x = vr(XF[buf][mi], 4); w = vr(WF[buf][ni], 4)
                    ops = f"{x}, {w}" if vmode else f"{w}, {x}"
                    a(f"v_mfma_f32_32x32x16_bf16 {acc}, {ops}, {'0' if first else acc}")
        for st in range(10):
            a(f"s_waitcnt lgkmcnt(0)")
            a("s_barrier")
            rd(st, 0, 0)
            if st > 0:
                mm(1, False)
            else:
                prof_mark(a, 0)
                srd(a, 36, 34, WS_END)
            for ks in range(1, 4):
                rd(st, ks, ks & 1)
                a("s_waitcnt lgkmcnt(6)")
                mm((ks-1) & 1, st == 0 and ks == 1)
        a("s_waitcnt lgkmcnt(0)")
        mm(1, False)
    mainloop("qk", False)
    prof_mark(a, 1)
    for ni in range(2):
        for mi in range(2):
            acc = ACC + 16*(ni*2+mi)
            for rh in range(2):
                i = ni*2 + rh
                d = 64 + 4*((ni*4+mi*2+rh) % 8)
                for r in range(4):
                    a(f"v_pk_mul_f32 {vr(acc+8*rh+2*r,2)}, {vr(acc+8*rh+2*r,2)}, s[{sScale}:{sScale+1}] op_sel_hi:[1,0]")
                for r in range(4):
                    a(f"v_cvt_pk_bf16_f32 v{d+r}, v{acc+8*rh+2*r}, v{acc+8*rh+2*r+1}")
                so = sSt if mi == 0 else sT+5
                a(f"buffer_store_dwordx4 {vr(d,4)}, v{SA[i]}, s[36:39], s{so} offen")
                a(f"""
                s_cmp_eq_u64 s[{40+2*i}:{41+2*i}], 0
                s_cbranch_scc1 G_nd{ni}{mi}{rh}
                s_mov_b64 exec, s[{40+2*i}:{41+2*i}]
                buffer_store_dwordx4 {vr(d,4)}, v{SD[i]}, s[36:39], s{so} offen
                s_mov_b64 exec, -1
                """)
                a.label(f"G_nd{ni}{mi}{rh}")
    a("s_branch G_end")
    a.label("G_vsetup")
    a(f"""
    s_sub_u32 s{sT+2}, s{sCt}, 10
    s_lshl_b32 s{sT+2}, s{sT+2}, 7
    s_lshl_b32 s{sT+4}, s{sT+1}, 6
    s_add_u32 s{sT+2}, s{sT+2}, s{sT+4}
    s_lshl_b32 s{sT+4}, s{sRt}, 2
    s_lshl_b32 s{sT+5}, s{sT}, 1
    s_add_u32 s{sT+4}, s{sT+4}, s{sT+5}
    s_mul_i32 s{sSt}, s{sT+4}, 3072
    s_add_u32 s{sSt}, s{sSt}, {WS_KV + 1536}
    v_mul_u32_u24 v{T+1}, 384, v{HF}
    v_and_b32 v{T+6}, 3, v{T}
    v_bfe_u32 v{T+7}, v{T}, 2, 1
    """)
    for ni in range(2):
        a(f"""
        v_add_u32 v{T+2}, s{sT+2}, v{T}
        v_add_u32 v{T+2}, {32*ni}, v{T+2}
        v_lshrrev_b32 v{T+2}, 3, v{T+2}
        v_mul_u32_u24 v{T+3}, 205, v{T+2}
        v_lshrrev_b32 v{T+3}, 10, v{T+3}
        v_mul_u32_u24 v{T+4}, 5, v{T+3}
        v_sub_u32 v{T+4}, v{T+2}, v{T+4}
        v_cmp_lt_u32 vcc, 2, v{T+4}
        v_cmp_eq_u32 s[40:41], 2, v{T+4}
        v_lshlrev_b32 v{T+3}, 1, v{T+3}
        v_cndmask_b32 v{T+5}, 0, 1, vcc
        v_mul_u32_u24 v{T+8}, 3, v{T+5}
        v_sub_u32 v{T+4}, v{T+4}, v{T+8}
        v_lshlrev_b32 v{T+4}, 2, v{T+4}
        v_lshl_add_u32 v{T+4}, v{T+7}, 3, v{T+4}
        v_cndmask_b32 v{T+4}, v{T+4}, 16, s[40:41]
        v_cndmask_b32 v{T+5}, v{T+5}, v{T+7}, s[40:41]
        v_add_u32 v{T+3}, v{T+3}, v{T+5}
        v_add_u32 v{T+4}, v{T+4}, v{T+6}
        v_mul_u32_u24 v{T+3}, {64*3072}, v{T+3}
        v_lshl_add_u32 v{T+3}, v{T+4}, 4, v{T+3}
        v_add_u32 v{SA[ni]}, v{T+3}, v{T+1}
        """)
    mainloop("v", True)
    prof_mark(a, 1)
    for ni in range(2):
        for mi in range(2):
            acc = ACC + 16*(ni*2+mi)
            for rh in range(2):
                d = 64 + 4*((ni*4+mi*2+rh) % 8)
                for r in range(4):
                    a(f"v_cvt_pk_bf16_f32 v{d+r}, v{acc+8*rh+2*r}, v{acc+8*rh+2*r+1}")
                a(f"buffer_store_dwordx4 {vr(d,4)}, v{SA[ni]}, s[36:39], s{sSt} offen offset:{mi*3072 + rh*768}")
    a.label("G_end")

def loader(a):
    va = [8, 9, 10, 11]; T = 12; LN = 2
    sW = 16; sRt = 17; sCt = 18; sBase = 19; sKs = 20; sKc = 21; sM0 = 22; sG = 23; sO = 24
    a(f"""
    s_and_b32 s{sKc}, s{sRt}, 3
    s_lshl_b32 s{sKc}, s{sKc}, 1
    s_and_b32 s{sO}, s{sCt}, 7
    s_add_u32 s{sKc}, s{sKc}, s{sO}
    s_mul_i32 s{sKc}, s{sKc}, 5
    s_lshr_b32 s{sKc}, s{sKc}, 2
    s_cmp_ge_u32 s{sKc}, 10
    s_cselect_b32 s{sO}, 10, 0
    s_sub_u32 s{sKc}, s{sKc}, s{sO}
    s_cmp_eq_u32 s{sW}, 1
    s_cbranch_scc1 L_w
    s_mul_i32 s{sBase}, s{sRt}, {128*1280}
    s_mov_b32 s{sKs}, 128
    s_mov_b32 s{sM0}, 0
    s_mov_b32 s{sG}, {32*1280}
    v_lshrrev_b32 v{T}, 3, v{LN}
    v_mul_u32_u24 v{T+1}, 1280, v{T}
    v_and_b32 v{T+2}, 7, v{LN}
    v_lshrrev_b32 v{T+3}, 1, v{T}
    v_xor_b32 v{T+4}, v{T+2}, v{T+3}
    v_lshl_add_u32 v{va[0]}, v{T+4}, 4, v{T+1}
    v_xor_b32 v{T+4}, 4, v{T+4}
    v_lshl_add_u32 v{va[1]}, v{T+4}, 4, v{T+1}
    v_add_u32 v{va[1]}, {10240-1024}, v{va[1]}
    v_add_u32 v{va[2]}, {2*(10240-1024)}, v{va[0]}
    v_add_u32 v{va[3]}, {2*(10240-1024)}, v{va[1]}
    s_waitcnt lgkmcnt(0)
    """)
    srd(a, 8, 4, 2048*1280)
    a("s_branch L_go")
    a.label("L_w")
    a(f"""
    s_lshl_b32 s{sBase}, s{sCt}, 8
    s_mov_b32 s{sKs}, {64*3840}
    s_mov_b32 s{sM0}, 16384
    s_mov_b32 s{sG}, {16*3840}
    v_lshrrev_b32 v{T}, 4, v{LN}
    v_mul_u32_u24 v{T+1}, 3840, v{T}
    v_bfe_u32 v{T+2}, v{LN}, 2, 2
    v_xor_b32 v{T+2}, v{T+2}, v{T}
    v_lshl_add_u32 v{T+1}, v{T+2}, 6, v{T+1}
    v_and_b32 v{T+2}, 3, v{LN}
    v_lshl_add_u32 v{va[0]}, v{T+2}, 4, v{T+1}
    v_add_u32 v{va[1]}, {4*3840-1024}, v{va[0]}
    v_add_u32 v{va[2]}, {2*(4*3840-1024)}, v{va[0]}
    v_add_u32 v{va[3]}, {3*(4*3840-1024)}, v{va[0]}
    s_waitcnt lgkmcnt(0)
    """)
    srd(a, 8, 6, 640*3840)
    a.label("L_go")
    prof_mark(a, 0)
    def issue(st):
        slot = (st % NSLOT) * 32768
        a(f"""
        s_mul_i32 s{sO}, s{sKc}, s{sKs}
        s_add_u32 m0, s{sM0}, {slot}
        s_add_u32 s{sO}, s{sO}, s{sBase}
        """)
        for g in range(4):
            if g:
                a(f"s_add_u32 m0, s{sM0}, {slot + 4096*g}")
                a(f"s_add_u32 s{sO}, s{sO}, s{sG}")
            for i in range(4): a(f"buffer_load_dwordx4 v{va[i]}, s[8:11], s{sO} offen offset:{1024*i} lds")
        a(f"""
        s_add_u32 s{sKc}, s{sKc}, 1
        s_cmp_eq_u32 s{sKc}, 10
        s_cselect_b32 s{sKc}, 0, s{sKc}
        """)
    for st in range(NSLOT - 1): issue(st)
    for st in range(10):
        issued = min(10, st + NSLOT - 1)
        if st == 0 and "m1issue" in sys.argv: prof_mark(a, 1)
        a(f"s_waitcnt vmcnt({16*(issued - st - 1)})")
        if st == 0 and "m1issue" not in sys.argv: prof_mark(a, 1)
        a("s_barrier")
        if st + NSLOT - 1 < 10: issue(st + NSLOT - 1)
    prof_end(a, 0, 34)
    a("s_endpgm")

def k1(a):
    prof_start(a)
    a(f"""
    s_load_dwordx4 s[4:7], s[0:1], 0
    s_load_dwordx2 s[34:35], s[0:1], 112
    s_cmp_ge_u32 s2, 256
    s_cbranch_scc1 G_exit
    v_lshrrev_b32 v1, 6, v0
    v_and_b32 v2, 63, v0
    s_and_b32 s3, s2, 7
    v_readfirstlane_b32 s16, v1
    s_lshr_b32 s24, s2, 3
    s_and_b32 s17, s3, 3
    s_lshl_b32 s17, s17, 2
    s_and_b32 s25, s24, 3
    s_add_u32 s17, s17, s25
    s_lshr_b32 s18, s3, 2
    s_lshl_b32 s18, s18, 3
    s_lshr_b32 s25, s24, 2
    s_add_u32 s18, s18, s25
    s_cmp_eq_u32 s18, 15
    s_cbranch_scc1 SP_entry
    s_cmp_lt_u32 s16, 2
    s_cbranch_scc1 L_entry
    s_cmp_lt_u32 s16, 4
    s_cbranch_scc1 {"G_exit" if "nokg" in sys.argv else "KG_entry"}
    s_sub_u32 s16, s16, 4
    s_setprio 2
    """)
    gemm(a)
    prof_end(a, 0, 34)
    a.label("G_exit")
    a("s_endpgm")
    a.label("L_entry")
    a("s_setprio 3")
    loader(a)
    a.label("SP_entry")
    a(f"""
    s_cmp_ge_u32 s16, 5
    s_cbranch_scc1 CH_entry
    """)
    a.label("KG_entry")
    kgen(a)
    a.label("CH_entry")
    chores(a)

KP = 32; KT_STRIDE = 4160
L2E = 1.4426950408889634
SLOTB = 528
HROW = 272; HARR = 43520; CH_LDS = 104448
def kgen(a0):
    sCh = 19; sT = 24; sB = 21; sV = 20
    LN = 2
    a = a0
    aR = 4; aS1 = 5; aS2 = 6; DT = 7
    PR = 8; LD = 14; kE = 15
    D = 8; TT = 28; XV = 32; YV = 96; XF = XV; YF = YV
    Y = {e: YV + 2*e for e in range(32)}
    MR = {0: 16, 1: 18, 2: 20, 8: 22, 9: 24, 10: 26}
    for b in range(5): MR[3+b] = Y[1 << b]
    M = lambda k: MR[k]
    F = XV + 16
    a(f"""
    s_load_dwordx8 s[40:47], s[0:1], 32
    s_load_dwordx4 s[48:51], s[0:1], 64
    s_load_dwordx4 s[52:55], s[0:1], 80
    s_mov_b64 s[56:57], 1
    s_lshl_b32 s{sV}, s18, 4
    s_add_u32 s{sV}, s{sV}, s17
    s_lshl_b32 s{sV}, s{sV}, 1
    s_add_u32 s{sV}, s{sV}, s16
    s_sub_u32 s{sV}, s{sV}, 2
    s_mul_i32 s{sCh}, s17, 10
    s_add_u32 s{sCh}, s{sCh}, s16
    s_add_u32 s{sCh}, s{sCh}, 480
    s_cmp_eq_u32 s18, 15
    s_cselect_b32 s{sCh}, s{sCh}, s{sV}
    s_mul_i32 s{sB}, s16, {32*HROW}
    s_add_u32 s{sB}, s{sB}, 16384
    s_mov_b32 m0, s{sB}
    v_and_b32 v{F+2}, 31, v{LN}
    v_lshrrev_b32 v{F+3}, 5, v{LN}
    v_mul_u32_u24 v{aR}, {HROW}, v{F+2}
    v_lshlrev_b32 v{F+2}, 4, v{F+2}
    v_lshl_add_u32 v{aR}, v{F+3}, 4, v{aR}
    v_lshl_add_u32 v{aS1}, v{F+3}, 9, v{F+2}
    v_lshl_add_u32 v{aS2}, v{F+3}, 10, v{F+2}
    v_add_u32 v{aR}, s{sB}, v{aR}
    v_lshrrev_b32 v{F+2}, 4, v{LN}
    v_mul_u32_u24 v{F+2}, 3072, v{F+2}
    v_bfe_u32 v{F+3}, v{LN}, 2, 2
    v_mul_u32_u24 v{F+3}, 384, v{F+3}
    v_and_b32 v{F+4}, 3, v{LN}
    v_cmp_eq_u32 vcc, 0, v{F+4}
    v_lshlrev_b32 v{F+4}, 4, v{F+4}
    v_add3_u32 v3, v{F+2}, v{F+3}, v{F+4}
    v_mov_b32 v{F+2}, 0x3f803f80
    s_mul_i32 s{sV}, s{sV}, {4*3072}
    s_add_u32 s{sV}, s{sV}, {WS_KV + 1536 + 320}
    v_cndmask_b32 v{TT}, 0, v{F+2}, vcc
    v_cndmask_b32 v{TT+1}, 0, v{F+2}, vcc
    v_cndmask_b32 v{TT+2}, 0, v{F+2}, vcc
    v_cndmask_b32 v{TT+3}, 0, v{F+2}, vcc
    s_sub_u32 s{sT}, s16, 2
    s_cmp_lt_u32 s{sT}, 2
    s_cselect_b32 vcc_lo, -1, 0
    s_mov_b32 vcc_hi, 0
    """)
    a(f"""
    s_lshl_b32 s{sT}, s{sCh}, 8
    v_lshl_add_u32 v{F}, v{LN}, 2, s{sT}
    s_lshl_b32 s{sT}, s{sCh}, 1
    v_mov_b32 v{F+1}, s{sT}
    s_mul_i32 s{sT+2}, s{sCh}, {KT_STRIDE}
    s_add_u32 s{sT+2}, s{sT+2}, {WS_KT}
    s_cmp_eq_u32 s18, 15
    """)
    pl = Asm()
    pl("s_waitcnt lgkmcnt(0)")
    pl(f"global_load_ushort v{LD}, v{F+1}, s[52:53]")
    pl(f"global_load_ushort v1, v{F+1}, s[54:55]")
    for i in range(6): pl(f"global_load_dword v{PR+i}, v{F}, s[{40+2*i}:{41+2*i}]")
    srd(pl, 36, 34, WS_END)
    pl("s_cbranch_scc0 KG_npf")
    pl(f"global_load_ushort v166, v{F+1}, s[52:53] offset:10")
    pl(f"global_load_ushort v167, v{F+1}, s[54:55] offset:10")
    for i in range(6): pl(f"global_load_dword v{160+i}, v{F}, s[{40+2*i}:{41+2*i}] offset:1280")
    pl("KG_npf:")
    pl(f"""
    s_cbranch_vccz KG_nov
    buffer_store_dwordx4 {vr(TT,4)}, v3, s[36:39], s{sV} offen
    KG_nov:
    s_mov_b32 vcc_lo, 0xaaaaaaaa
    s_mov_b32 vcc_hi, 0xaaaaaaaa
    """)
    a = Asm()
    L2Elo = L2E - struct.unpack("<f", struct.pack("<f", L2E))[0]
    T = F + 8
    a(f"""
    s_waitcnt vmcnt(0)
    KG_round:
    v_lshlrev_b32 v{LD}, 16, v{LD}
    v_mul_f32 v{T}, {f32(L2E)}, v{LD}
    v_mov_b32 v{T+2}, {f32(L2E)}
    v_fma_f32 v{T+1}, v{LD}, v{T+2}, -v{T}
    v_fmac_f32 v{T+1}, {f32(L2Elo)}, v{LD}
    v_exp_f32 v{T}, v{T}
    v_lshlrev_b32 v1, 16, v1
    v_mul_f32 v{T+1}, {f32(math.log(2.0))}, v{T+1}
    v_cndmask_b32 v1, 0, v1, s[56:57]
    v_fma_f32 v{T}, v{T}, v{T+1}, v{T}
    v_cvt_pk_bf16_f32 v{T}, v{T}, v{T}
    v_and_b32 v{DT}, 0xffff0000, v{T}
    v_mul_f32 v{kE}, {f32(L2E)}, v{DT}
    v_mul_f32 v{LD}, {f32(1/(2*math.pi))}, v{DT}
    """)
    def par(*seqs):
        for t in zip(*seqs):
            for x in t: a(x)
    U = [Y[9], Y[12]]; CA = [Y[17], Y[19]]; CB = [Y[21], Y[23]]; W = [Y[25], Y[28]]
    X = {}; nxt = [XV]
    def alloc(e):
        X[e] = nxt[0]; nxt[0] += 2; return X[e]
    alloc(0)
    par(*[[(f"v_and_b32 v{U[p]+i}, 0xffff0000, v{PR+i}" if p else f"v_lshlrev_b32 v{U[p]+i}, 16, v{PR+i}") for i in range(6)] for p in range(2)])
    par(*[f"""v_mul_f32 v{U[p]}, v{U[p]}, v{kE}
    v_mul_f32 v{U[p]+1}, v{U[p]+1}, v{LD}
    v_mul_f32 v{W[p]}, 32.0, v{U[p]}
    v_mul_f32 v{W[p]+1}, 32.0, v{U[p]+1}
    v_exp_f32 v{U[p]}, v{U[p]}
    v_fract_f32 v{U[p]+1}, v{U[p]+1}
    v_exp_f32 v{W[p]}, v{W[p]}
    v_fract_f32 v{W[p]+1}, v{W[p]+1}
    v_cos_f32 v{CA[p]}, v{U[p]+1}
    v_mul_f32 v{W[p]+2}, v{U[p]+4}, v{U[p]+2}
    v_sin_f32 v{CA[p]+1}, v{U[p]+1}
    v_mul_f32 v{W[p]+3}, v{U[p]+4}, v{U[p]+3}
    v_cos_f32 v{CB[p]}, v{W[p]+1}
    v_fma_f32 v{W[p]+2}, -v{U[p]+5}, v{U[p]+3}, v{W[p]+2}
    v_sin_f32 v{CB[p]+1}, v{W[p]+1}
    v_fmac_f32 v{W[p]+3}, v{U[p]+5}, v{U[p]+2}
    v_mul_f32 v{CA[p]}, v{CA[p]}, v{U[p]}
    v_mul_f32 v{CA[p]+1}, v{CA[p]+1}, v{U[p]}
    v_cvt_pk_f16_f32 v{X[0]+p}, v{W[p]+2}, -v{W[p]+3}
    v_mul_f32 v{CB[p]}, v{CB[p]}, v{W[p]}
    v_mul_f32 v{CB[p]+1}, v{CB[p]+1}, v{W[p]}""".split("\n") for p in range(2)])
    XROW = {}
    h0 = list(range(8)) + [512, 516, 520, 1024, 1032, 1280, 1288]
    h1 = [256, 256, 258, 260, 260, 260, 262, 264, 768, 772, 776, 1536, 1544, 1792, 1800]
    for h, lst in enumerate((h0, h1)):
        for r, e in enumerate(lst): XROW.setdefault(e, []).append(8*(r>>2) + 4*h + (r&3))
    def sq(c, cur, last, k, p, t):
        s = c + 2*cur; d = c + 2*(1-cur)
        o = [f"v_cvt_pk_f16_f32 v{M(k)+p}, v{s}, v{s+1}"]
        if not last:
            o += [f"v_mul_f32 v{t}, v{s+1}, v{s+1}", f"v_add_f32 v{d+1}, v{s}, v{s}", f"v_fma_f32 v{d}, v{s}, v{s}, -v{t}", f"v_mul_f32 v{d+1}, v{d+1}, v{s+1}"]
        return o
    def prods(lst, conj):
        for i in range(0, len(lst), 2):
            g = lst[i:i+2]
            for j, (d, s_, k) in enumerate(g):
                for p in range(2): a(f"v_pk_mul_f16 v{TT+2*j+p}, v{s_+p}, v{M(k)+p} op_sel_hi:[1,0]")
            for j, (d, s_, k) in enumerate(g):
                for p in range(2): a(f"v_pk_fma_f16 v{d+p}, v{s_+p}, v{M(k)+p}, v{TT+2*j+p} op_sel:[1,1,0] op_sel_hi:[0,1,1] {'neg_hi' if conj else 'neg_lo'}:[1,0,0]")
    def xp(es, k): return [(alloc(e + (1 << k)), X[e], k) for e in es]
    for k in range(6):
        seqs = []
        for p in range(2):
            if k < 5: seqs.append(sq(CA[p], k & 1, k == 4, k, p, W[p]+4))
            seqs.append(sq(CB[p], k & 1, k == 5, k + 5, p, W[p]+5))
        n = max(len(q) for q in seqs)
        for i in range(n):
            for q in seqs:
                if i < len(q): a(q[i])
    prods(xp([0], 0) + xp([0], 1), True)
    prods(xp([1], 1) + xp([0, 1, 2], 2), True)
    prods(xp([3], 2) + xp([0], 3) + xp([0, 2, 4, 6], 8), True)
    prods(xp([8], 8) + xp([0, 4, 8], 9) + xp([256, 260], 9), True)
    prods(xp([264], 9) + xp([0, 8, 256, 264, 512, 520, 768], 10), True)
    prods(xp([776], 10), True)
    assert nxt[0] <= XV + 56 and set(XROW) <= set(X), (nxt, X)
    nx = len(a.lines)
    a(f"v_mov_b32 v{Y[0]}, 0x3c00")
    a(f"v_mov_b32 v{Y[0]+1}, 0x3c00")
    def yp(es): return [(Y[e], Y[e - (1 << (e.bit_length()-1))], 3 + e.bit_length() - 1) for e in es]
    prods(yp([3, 5, 6, 9, 10, 12, 7, 11, 13, 14, 17, 18, 15, 19] + list(range(20, 32))), False)
    for r in range(4): a(f"v_mov_b32 v{TT+r}, 0")
    p1 = a.lines
    a = Asm()
    for e, rows in XROW.items():
        for r in rows:
            for p in range(2): a(f"ds_write_addtid_b32 v{X[e]+p} offset:{r*HROW+p*HARR}")
    for ks in range(16): a(f"ds_read_b128 {vr(XF+4*ks,4)}, v{aR} offset:{32*(ks&7)+(ks>>3)*HARR}")
    p2x = a.lines
    a = Asm()
    prof_mark(a, 0)
    for p in range(2):
        for e in range(32): a(f"ds_write_addtid_b32 v{Y[e]+p} offset:{e*HROW+p*HARR}")
    for ks in range(16): a(f"ds_read_b128 {vr(YF+4*ks,4)}, v{aR} offset:{32*(ks&7)+(ks>>3)*HARR}")
    a(f"""
    s_mov_b64 exec, 15
    buffer_store_dwordx4 {vr(TT,4)}, v{aS1}, s[36:39], s{sT+2} offen
    s_mov_b64 exec, -1
    """)
    for ks in range(16):
        a(f"s_waitcnt lgkmcnt({15-ks})")
        a(f"v_mfma_f32_32x32x16_f16 {vr(D,16)}, {vr(XF+4*ks,4)}, {vr(YF+4*ks,4)}, {'0' if ks == 0 else vr(D,16)}")
    prof_mark(a, 1)
    O = XV
    cv = lambda d, x, y: a(f"v_cvt_pk_bf16_f32 v{d}, v{x}, v{y}")
    a(f"v_fma_f32 v{D}, v{D}, v{DT}, v1")
    for r in range(1, 8): a(f"v_mul_f32 v{D+r}, v{D+r}, v{DT}")
    for j in range(4): cv(O+j, D+2*j, D+2*j+1)
    a(f"buffer_store_dwordx4 {vr(O,4)}, v{aS1}, s[36:39], s{sT+2} offen offset:{2*KP}")
    for r in range(8, 15): a(f"v_mul_f32 v{D+r}, v{D+r}, v{DT}")
    for j, (x, y) in enumerate(((8, 8), (8, 9), (9, 9), (10, 10))): cv(O+4+j, D+x, D+y)
    a(f"buffer_store_dwordx4 {vr(O+4,4)}, v{aS1}, s[36:39], s{sT+2} offen offset:{2*KP+1024}")
    for i in range(2):
        w = D + 11 + 2*i; o = O + 8 + 4*i
        a(f"v_cndmask_b32 v{o+2}, v{w}, v{w+1}, vcc")
        cv(o, w, w); cv(o+1, w, w); cv(o+3, w+1, w+1); cv(o+2, o+2, w+1)
        a(f"buffer_store_dwordx4 {vr(o,4)}, v{aS2}, s[36:39], s{sT+2} offen offset:{2*KP+2048+512*i}")
    p2y = a.lines
    kgs = int(ARG("kgs", 3)); bx = int(ARG("bx", 10)); by = int(ARG("by", 10)); bl = int(ARG("bl", 1))
    seg = [[] for _ in range(11)]
    seg[bl] += pl.lines
    nseg = bx - kgs
    per = -(-len(p1) // nseg)
    for i in range(nseg): seg[kgs + i] += p1[i*per:(i+1)*per]
    seg[bx] += p2x; seg[by] += p2y
    print(f"kgen p1 {len(p1)} instrs, {per} per seg", file=sys.stderr)
    a = a0
    for b in range(by + 1):
        if b: a(f"s_cbranch_scc1 KG_b{b}\n s_barrier\n KG_b{b}:")
        if b == bx and "kgprio" in sys.argv: a("s_setprio 3")
        a.lines += seg[b]
    a(f"""
    s_cbranch_scc0 KG_done
    s_add_u32 s{sT+2}, s{sT+2}, {5*KT_STRIDE}
    {chr(10).join(f"v_mov_b32 v{PR+i}, v{160+i}" for i in range(7))}
    v_mov_b32 v1, v167
    s_add_u32 s17, s17, 16
    s_cmp_lt_u32 s17, 32
    s_cbranch_scc1 KG_round
    KG_done:
    """)
    prof_end(a, 0, 34)
    a("s_endpgm")

def chores(a):
    LN = 2; T = 8; sId = 19; sT = 24; R = 16; sI = 20
    a(f"""
    s_load_dwordx2 s[54:55], s[0:1], 16
    s_sub_u32 s{sI}, s16, 5
    s_mul_i32 s{sId}, s17, 3
    s_add_u32 s{sId}, s{sId}, s{sI}
    s_mul_i32 s{sI}, s{sI}, 10240
    s_add_u32 s{sI}, s{sI}, {CH_LDS}
    v_lshlrev_b32 v{T}, 4, v{LN}
    v_and_b32 v{T+1}, 15, v{LN}
    v_lshrrev_b32 v{T+2}, 4, v{LN}
    v_mul_u32_u24 v{T+3}, 102400, v{T+2}
    v_lshl_add_u32 v{T+3}, v{T+1}, 4, v{T+3}
    v_bfe_u32 v{T+4}, v{LN}, 2, 2
    v_and_b32 v{T+5}, 3, v{LN}
    v_mul_u32_u24 v{T+4}, 1280, v{T+4}
    v_mul_u32_u24 v{T+2}, 160, v{T+2}
    v_add3_u32 v{T+4}, v{T+4}, v{T+2}, s{sI}
    v_lshl_add_u32 v{T+6}, v{T+5}, 4, v{T+4}
    v_lshl_add_u32 v{T+7}, v{T+5}, 3, v{T+4}
    s_waitcnt lgkmcnt(0)
    """)
    srd(a, 8, 54, 640*1280)
    srd(a, 36, 34, WS_END)
    a.label("CH_loop")
    a(f"""
    s_mul_i32 s{sT+2}, s{sId}, 10240
    s_lshr_b32 s{sT}, s{sId}, 2
    s_mul_i32 s{sT}, s{sT}, 5120
    s_and_b32 s{sT+1}, s{sId}, 3
    s_lshl_b32 s{sT+1}, s{sT+1}, 8
    s_add_u32 s{sT}, s{sT}, s{sT+1}
    s_add_u32 s{sT}, s{sT}, {WS_WO}
    """)
    for i in range(10):
        if i % 4 == 0:
            a(f"s_add_u32 m0, s{sI}, {1024*i}")
            a(f"s_add_u32 s{sT+3}, s{sT+2}, {1024*i}")
        a(f"buffer_load_dwordx4 v{T}, s[8:11], s{sT+3} offen offset:{1024*(i%4)} lds")
    a("s_waitcnt vmcnt(0)")
    for i in range(10):
        h, j = divmod(i, 5)
        co = 640*h + (64*(j>>1) + 8*(j&1) if j < 4 else 128)
        for hh in range(2): a(f"ds_read_b64_tr_b16 {vr(R+4*i+2*hh,2)}, v{T+6 if j < 4 else T+7} offset:{co+5120*hh}")
    a("s_waitcnt lgkmcnt(0)")
    for i in range(10):
        h, j = divmod(i, 5)
        a(f"s_add_u32 s{sT+1}, s{sT}, {h*409600 + j*1024}")
        a(f"buffer_store_dwordx4 {vr(R+4*i,4)}, v{T+3}, s[36:39], s{sT+1} offen")
    a(f"""
    s_add_u32 s{sId}, s{sId}, 48
    s_cmp_lt_u32 s{sId}, 80
    s_cbranch_scc1 CH_loop
    """)
    prof_end(a, 0, 34)
    a("s_endpgm")

CH = 24576
FLAG = 3 * CH + 256

def attn(a):
    S = [16, 32]; O = [48, 64]
    Q1 = [80, 84]; Q2 = [88, 90]; K1 = 92; K2 = 96; VL = [100, 104]; VH = 108
    IDX = 98; DV = 99
    aK1 = 112; aK2 = 113; aVL = 114; aVH = 115; bK1 = 116; bK2 = 117; bV = 118; bQ = 119
    T = 4
    LN = 2; HF = 3; L31 = 120
    sW = 16; sHead = 17; sQb = 18; sKV = 19; sM0 = 20; sB = 21; sMode = 22; sSlot = 23; sNext = 24; sT = 25; sOb = 29; sKH = 30
    PRIO = "noprio" not in sys.argv
    a.label("A_entry")
    a(f"""
    v_lshrrev_b32 v1, 6, v0
    v_and_b32 v{LN}, 63, v0
    s_and_b32 s3, s2, 7
    v_readfirstlane_b32 s{sW}, v1
    s_lshr_b32 s{sT}, s2, 3
    s_and_b32 s{sT+1}, s{sT}, 3
    s_lshl_b32 s{sHead}, s3, 2
    s_add_u32 s{sHead}, s{sHead}, s{sT+1}
    s_lshr_b32 s{sQb}, s{sT}, 2
    v_lshrrev_b32 v{HF}, 5, v{LN}
    v_and_b32 v{L31}, 31, v{LN}
    v_lshlrev_b32 v{DV}, 4, v{LN}
    v_lshlrev_b32 v{T}, 4, v{L31}
    v_lshl_add_u32 v{bQ}, v{HF}, 9, v{T}
    v_lshl_add_u32 v{T+1}, v{HF}, 3, v{T}
    s_lshr_b32 s{sKH}, s{sW}, 2
    s_mul_i32 s{sKV}, s{sHead}, {64*3072}
    s_mul_i32 s{sM0}, s{sW}, 3072
    s_add_u32 s{sKV}, s{sKV}, s{sM0}
    s_add_u32 s{sKV}, s{sKV}, {WS_KV}
    s_lshl_b32 s{sT}, s{sQb}, 3
    s_and_b32 s{sT+1}, s{sW}, 3
    s_lshl_b32 s{sT+1}, s{sT+1}, 1
    s_add_u32 s{sT}, s{sT}, s{sT+1}
    s_add_u32 s{sOb}, s{sT}, s{sKH}
    s_mul_i32 s{sOb}, s{sOb}, {80*512}
    s_lshl_b32 s{sT+1}, s{sHead}, 6
    s_add_u32 s{sT}, s{sT}, s{sT+1}
    s_mul_i32 s{sT}, s{sT}, 1536
    s_mov_b32 s{sMode}, 0
    s_mov_b32 m0, s{sM0}
    s_waitcnt lgkmcnt(0)
    """)
    srd(a, 8, 4, WS_END)
    def dma(soff):
        for j in range(3):
            a(f"buffer_load_dwordx4 v{DV}, s[8:11], s{soff} offen offset:{1024*j} lds")
    dma(sKV)
    a(f"""
    buffer_load_dwordx4 {vr(Q1[0],4)}, v{bQ}, s[8:11], s{sT} offen
    buffer_load_dwordx2 {vr(Q2[0],2)}, v{T+1}, s[8:11], s{sT} offen offset:1024
    buffer_load_dwordx4 {vr(Q1[1],4)}, v{bQ}, s[8:11], s{sT} offen offset:1536
    buffer_load_dwordx2 {vr(Q2[1],2)}, v{T+1}, s[8:11], s{sT} offen offset:{1536+1024}
    s_add_u32 m0, s{sM0}, {CH}
    s_add_u32 s{sNext}, s{sKV}, {CH}
    """)
    dma(sNext)
    a(f"""
    s_and_b32 s{sT}, s{sHead}, 1
    v_cmp_eq_u32 s[32:33], s{sT}, v{HF}
    v_mov_b32 v{T+2}, {512 + 20*16}
    v_mul_u32_u24 v{bV}, 384, v{HF}
    v_min_u32 v{T}, {23*16}, v{T}
    v_add_u32 v{bV}, v{bV}, v{T}
    v_cndmask_b32 v{T+1}, v{T+2}, v{T+1}, s[32:33]
    s_mul_i32 s{sT}, s{sKH}, 3072
    v_mov_b32 v{IDX}, 0xdddddddd
    v_add_u32 v{bK1}, s{sT}, v{bQ}
    v_add_u32 v{bK2}, s{sT}, v{T+1}
    v_add_u32 v{bV}, s{sT}, v{bV}
    v_mov_b32 v{T+14}, v{T+1}
    s_branch A_started
    """)
    a.label("A_start")
    a(f"s_mov_b32 m0, s{sM0}")
    a(f"s_add_u32 s{sNext}, s{sKV}, {CH}")
    dma(sKV)
    a(f"s_add_u32 m0, s{sM0}, {CH}")
    a("s_nop 0")
    dma(sNext)
    a.label("A_started")
    a(f"s_add_u32 s{sNext}, s{sKV}, {2*CH}")
    a(f"v_mov_b32 v{T}, 0")
    a(f"v_mov_b32 v{T+1}, {FLAG}")
    a(f"ds_write_b32 v{T+1}, v{T}")
    for r in range(32): a(f"v_mov_b32 v{O[0]+r}, 0")
    for r in range(4): a(f"v_mov_b32 v{VH+r}, 0")
    a(f"""
    v_mov_b32 v{aK1}, v{bK1}
    v_mov_b32 v{aK2}, v{bK2}
    v_mov_b32 v{aVL}, v{bV}
    v_mov_b32 v{aVH}, v{bV}
    s_mov_b32 s{sB}, 0
    s_mov_b32 s{sSlot}, {CH}
    s_waitcnt vmcnt(3) lgkmcnt(0)
    s_barrier
    s_cmp_lg_u32 s{sMode}, 0
    s_cbranch_scc1 A_havemax
    ds_read_b128 {vr(T,4)}, v{bQ}
    ds_read_b64 {vr(T+4,2)}, v{T+14} offset:1024
    ds_read_b128 {vr(K1,4)}, v{aK1}
    ds_read_b64 {vr(K2,2)}, v{aK2} offset:1024
    ds_read_b128 {vr(VL[0],4)}, v{aVL} offset:1536
    """)
    for q in range(2):
        for r in range(2): a(f"v_cndmask_b32 v{Q2[q]+r}, 0, v{Q2[q]+r}, s[32:33]")
    a("s_waitcnt lgkmcnt(3)")
    for q in range(2):
        a(f"v_mfma_f32_32x32x16_bf16 {vr(S[q],16)}, {vr(T,4)}, {vr(Q1[q],4)}, 0")
        a(f"v_mfma_f32_32x32x8_bf16 {vr(S[q],16)}, {vr(T+4,2)}, {vr(Q2[q],2)}, {vr(S[q],16)}")
    def maxred(q, acc=False):
        s0 = S[q]; m = T + 6 + 2*q
        if acc:
            for r in range(0, 16, 2): a(f"v_max3_f32 v{m}, v{m}, v{s0+r}, v{s0+r+1}")
            return
        a(f"v_max3_f32 v{m}, v{s0}, v{s0+1}, v{s0+2}")
        a(f"v_max3_f32 v{m+1}, v{s0+3}, v{s0+4}, v{s0+5}")
        for r in range(6, 14, 4):
            a(f"v_max3_f32 v{m}, v{m}, v{s0+r}, v{s0+r+1}")
            a(f"v_max3_f32 v{m+1}, v{m+1}, v{s0+r+2}, v{s0+r+3}")
        a(f"v_max3_f32 v{m}, v{m}, v{s0+14}, v{s0+15}")
        a(f"v_max_f32 v{m}, v{m}, v{m+1}")
    def setm(q):
        m = T + 6 + 2*q
        a(f"""
        v_mov_b32 v{m+1}, v{m}
        v_permlane32_swap_b32 v{m}, v{m+1}
        v_max_f32 v{m}, v{m}, v{m+1}
        v_and_b32 v{m+1}, 0xffff0000, v{m}
        v_sub_f32 v{m}, v{m+1}, v{m}
        v_cvt_pk_bf16_f32 v{m}, -v{m+1}, v{m}
        v_cndmask_b32 v{Q2[q]}, v{m}, v{Q2[q]}, s[32:33]
        """)
    maxred(0); setm(0)
    a(f"""
    s_waitcnt lgkmcnt(1)
    v_mfma_f32_32x32x16_bf16 {vr(S[0],16)}, {vr(K1,4)}, {vr(Q1[0],4)}, 0
    v_mfma_f32_32x32x8_bf16 {vr(S[0],16)}, {vr(K2,2)}, {vr(Q2[0],2)}, {vr(S[0],16)}
    """)
    maxred(1); setm(1)
    a("s_branch A_preloop")
    a.label("A_havemax")
    a(f"""
    ds_read_b128 {vr(K1,4)}, v{aK1}
    ds_read_b64 {vr(K2,2)}, v{aK2} offset:1024
    ds_read_b128 {vr(VL[0],4)}, v{aVL} offset:1536
    s_waitcnt lgkmcnt(1)
    v_mfma_f32_32x32x16_bf16 {vr(S[0],16)}, {vr(K1,4)}, {vr(Q1[0],4)}, 0
    v_mfma_f32_32x32x8_bf16 {vr(S[0],16)}, {vr(K2,2)}, {vr(Q2[0],2)}, {vr(S[0],16)}
    s_nop 7
    """)
    a.label("A_preloop")
    a("s_waitcnt lgkmcnt(0)")
    prof_mark(a, 0)
    a.label("A_loop")
    TB = 6144
    for j in range(4):
        for q in range(2):
            cur = S[q]; oth = S[1-q]
            e = [f"v_exp_f32 v{cur+r}, v{cur+r}" for r in range(16)]
            if q == 0:
                if j == 3:
                    a(f"""
                    s_cmp_eq_u32 s{sB}, 7
                    s_cbranch_scc1 A_nobar
                    s_waitcnt vmcnt(0)
                    s_barrier
                    v_add_u32 v{aK1}, s{sSlot}, v{bK1}
                    v_add_u32 v{aK2}, s{sSlot}, v{bK2}
                    v_add_u32 v{aVL}, s{sSlot}, v{bV}
                    s_cmp_eq_u32 s{sB}, 6
                    s_cbranch_scc1 A_nobar
                    s_add_u32 s{sT}, s{sSlot}, {CH}
                    s_cmp_eq_u32 s{sT}, {3*CH}
                    s_cselect_b32 s{sT}, 0, s{sT}
                    s_add_u32 m0, s{sM0}, s{sT}
                    """)
                    dma(sNext)
                    a(f"s_add_u32 s{sNext}, s{sNext}, {CH}")
                    a.label("A_nobar")
                a(f"ds_read_b128 {vr(VL[(j+1)&1],4)}, v{aVL} offset:{((j+1)%4)*TB+1536}")
                if PRIO: a(f"s_setprio {3 - (j+1)%4}")
                elif j not in (0, 3): a("s_nop 0")
            else:
                a("s_nop 0")
                a("s_waitcnt lgkmcnt(0)")
            a(f"v_smfmac_f32_32x32x32_bf16 {vr(O[1-q],16)}, {vr(VH,4)}, {vr(oth+8,8)}, v{IDX}")
            if q == 0: a(f"ds_read_b128 {vr(VH,4)}, v{aVH} offset:{j*TB+1536+768}")
            for x in e[0:4]: a(x)
            a(f"v_mfma_f32_32x32x16_bf16 {vr(oth,16)}, {vr(K1,4)}, {vr(Q1[1-q],4)}, 0")
            if q == 0: a(f"ds_read_b128 {vr(K1,4)}, v{aK1} offset:{((j+1)%4)*TB}")
            for x in e[4:8]: a(x)
            a(f"v_mfma_f32_32x32x8_bf16 {vr(oth,16)}, {vr(K2,2)}, {vr(Q2[1-q],2)}, {vr(oth,16)}")
            if q == 0: a(f"ds_read_b64 {vr(K2,2)}, v{aK2} offset:{((j+1)%4)*TB+1024}")
            for x in e[8:12]: a(x)
            a(f"v_smfmac_f32_32x32x32_bf16 {vr(O[q],16)}, {vr(VL[j&1],4)}, {vr(cur,8)}, v{IDX}")
            if j == 3 and q == 1:
                a(f"v_mov_b32 v{aVH}, v{aVL}")
            for x in e[12:16]: a(x)
    a(f"""
    s_add_u32 s{sSlot}, s{sSlot}, {CH}
    s_cmp_eq_u32 s{sSlot}, {3*CH}
    s_cselect_b32 s{sSlot}, 0, s{sSlot}
    s_add_u32 s{sB}, s{sB}, 1
    s_cmp_lg_u32 s{sB}, 8
    s_cbranch_scc1 A_loop
    """)
    prof_mark(a, 1)
    a(f"v_smfmac_f32_32x32x32_bf16 {vr(O[1],16)}, {vr(VH,4)}, {vr(S[1]+8,8)}, v{IDX}")
    a(f"""
    s_lshr_b32 s{sT}, s{sHead}, 1
    s_mul_i32 s{sT}, s{sT}, {5*512}
    s_add_u32 s{sT}, s{sT}, s{sOb}
    s_add_u32 s{sT}, s{sT}, {WS_O}
    s_and_b32 s{sT+1}, s{sHead}, 1
    s_mul_i32 s{sT+2}, s{sT+1}, {3*512}
    s_add_u32 s{sT+2}, s{sT+2}, s{sT}
    s_lshl_b32 s{sT+1}, s{sT+1}, 3
    s_add_u32 s{sT}, s{sT}, s{sT+1}
    s_xor_b32 s{sT+1}, s{sW}, 4
    s_mul_i32 s{sT+1}, s{sT+1}, 3072
    v_add_u32 v{T}, s{sM0}, v{DV}
    v_add_u32 v{T+1}, s{sT+1}, v{DV}
    v_mov_b32 v{T+2}, {FLAG}
    v_max_f32 v{T+3}, v{O[0]+8}, v{O[1]+8}
    v_add_f32 v{T+4}, v{O[0]+8}, v{O[1]+8}
    v_cmp_ngt_f32 vcc, 0x5f000000, v{T+4}
    s_cmp_lg_u32 s{sKH}, 0
    s_cbranch_scc1 A_x1
    """)
    for r in range(3): a(f"ds_write_b128 v{T}, {vr(O[1]+4*r,4)} offset:{2*CH+1024*r}")
    a("s_branch A_x2")
    a.label("A_x1")
    for r in range(3): a(f"ds_write_b128 v{T}, {vr(O[0]+4*r,4)} offset:{2*CH+1024*r}")
    for r in range(12): a(f"v_mov_b32 v{O[0]+r}, v{O[1]+r}")
    a.label("A_x2")
    a(f"""
    s_cmp_eq_u32 vcc_hi, 0
    s_cbranch_scc1 A_ok
    ds_write_b32 v{T+2}, v{IDX}
    """)
    a.label("A_ok")
    a(f"""
    s_waitcnt lgkmcnt(0)
    s_barrier
    ds_read_b128 {vr(S[0]+8,4)}, v{T+1} offset:{2*CH+2048}
    ds_read_b128 {vr(S[0],4)}, v{T+1} offset:{2*CH}
    ds_read_b128 {vr(S[0]+4,4)}, v{T+1} offset:{2*CH+1024}
    ds_read_b32 v{T+3}, v{T+2}
    s_waitcnt lgkmcnt(3)
    """)
    for r in range(8, 12): a(f"v_add_f32 v{O[0]+r}, v{O[0]+r}, v{S[0]+r}")
    a(f"""
    v_mov_b32 v{T}, v{O[0]+8}
    v_mov_b32 v{T+1}, v{O[0]+8}
    v_permlane32_swap_b32 v{T}, v{T+1}
    v_rcp_f32 v{T}, v{T+1}
    s_waitcnt lgkmcnt(1)
    """)
    for r in range(8): a(f"v_add_f32 v{O[0]+r}, v{O[0]+r}, v{S[0]+r}")
    for r in range(12): a(f"v_mul_f32 v{O[0]+r}, v{O[0]+r}, v{T}")
    for r in range(6): a(f"v_cvt_pk_bf16_f32 v{T+4+r}, v{O[0]+2*r}, v{O[0]+2*r+1}")
    a(f"""
    buffer_store_dwordx4 {vr(T+4,4)}, v{bQ}, s[8:11], s{sT+2} offen
    s_mov_b32 exec_hi, 0
    buffer_store_dwordx2 {vr(T+8,2)}, v{bQ}, s[8:11], s{sT} offen offset:1024
    s_mov_b64 exec, -1
    s_waitcnt lgkmcnt(0)
    v_readfirstlane_b32 s{sT}, v{T+3}
    s_cmp_lg_u32 s{sMode}, 0
    s_cbranch_scc1 A_end
    s_cmp_eq_u32 s{sT}, 0
    s_cbranch_scc1 A_end
    """)
    a(f"""
    s_waitcnt vmcnt(0)
    v_mov_b32 v{T+6}, 0xff800000
    v_mov_b32 v{T+8}, 0xff800000
    v_cndmask_b32 v{Q2[0]}, 0, v{Q2[0]}, s[32:33]
    v_cndmask_b32 v{Q2[1]}, 0, v{Q2[1]}, s[32:33]
    s_mov_b32 s{sB}, 0
    s_mov_b32 s{sNext}, s{sKV}
    s_mov_b32 m0, s{sM0}
    s_mul_i32 s{sT+1}, s{sKH}, 3072
    """)
    a.label("A_fchunk")
    a("s_barrier")
    dma(sNext)
    a(f"""
    s_add_u32 s{sNext}, s{sNext}, {CH}
    v_subrev_u32 v{aK1}, s{sT+1}, v{bK1}
    v_subrev_u32 v{aK2}, s{sT+1}, v{bK2}
    s_mov_b32 s{sT}, 0
    s_waitcnt vmcnt(0)
    s_barrier
    """)
    a.label("A_ftile")
    a(f"""
    ds_read_b128 {vr(K1,4)}, v{aK1}
    ds_read_b64 {vr(K2,2)}, v{aK2} offset:1024
    v_add_u32 v{aK1}, 3072, v{aK1}
    v_add_u32 v{aK2}, 3072, v{aK2}
    s_waitcnt lgkmcnt(0)
    """)
    for q in range(2):
        a(f"v_mfma_f32_32x32x16_bf16 {vr(S[q],16)}, {vr(K1,4)}, {vr(Q1[q],4)}, 0")
        a(f"v_mfma_f32_32x32x8_bf16 {vr(S[q],16)}, {vr(K2,2)}, {vr(Q2[q],2)}, {vr(S[q],16)}")
    maxred(0, True); maxred(1, True)
    a(f"""
    s_add_u32 s{sT}, s{sT}, 1
    s_cmp_lg_u32 s{sT}, 8
    s_cbranch_scc1 A_ftile
    s_add_u32 s{sB}, s{sB}, 1
    s_cmp_lg_u32 s{sB}, 8
    s_cbranch_scc1 A_fchunk
    """)
    setm(0); setm(1)
    a(f"""
    s_mov_b32 s{sMode}, 1
    s_barrier
    s_branch A_start
    """)
    a.label("A_end")
    prof_end(a, 1)
    a.label("A_exit")
    a("s_endpgm")

UST = 4640; UB = 8 * KT_STRIDE
def conv(a):
    LN = 2; sW = 16; sG = 17; sT = 18
    Y = 16; TF = 48; BF = 80
    aT = [4, 5]; aB = 6; T = 8; R = 112
    a(f"""
    s_load_dwordx2 s[6:7], s[0:1], 24
    s_load_dwordx2 s[28:29], s[0:1], 96
    v_lshrrev_b32 v1, 6, v0
    v_and_b32 v{LN}, 63, v0
    s_sub_u32 s{sT}, s2, 256
    v_readfirstlane_b32 s{sW}, v1
    s_and_b32 s{sG}, s{sT}, 7
    s_mul_i32 s{sG}, s{sG}, 20
    s_lshr_b32 s{sT}, s{sT}, 3
    s_add_u32 s{sG}, s{sG}, s{sT}
    v_mul_u32_u24 v{T}, 5120, v0
    s_lshl_b32 s{sT}, s{sG}, 3
    v_add_u32 v{T}, s{sT}, v{T}
    v_subrev_u32 v{T+1}, 1280, v{T}
    v_lshlrev_b32 v{T+2}, 4, v{LN}
    s_lshl_b32 s{sT}, s{sG}, 2
    s_lshr_b32 s{sT+1}, s{sW}, 1
    s_add_u32 s{sT}, s{sT}, s{sT+1}
    s_mul_i32 s{sT}, s{sT}, {KT_STRIDE}
    s_and_b32 s{sT+1}, s{sW}, 1
    s_lshl_b32 s{sT+1}, s{sT+1}, 2
    s_sub_u32 s{sT}, s{sT}, s{sT+1}
    s_add_u32 s{sT}, s{sT}, {WS_KT}
    s_mul_i32 m0, s{sW}, {KT_STRIDE}
    s_add_u32 s{sT+1}, s{sT}, 4096
    s_waitcnt lgkmcnt(0)
    """)
    srd(a, 12, 6, 2048*1280)
    srd(a, 8, 4, WS_END)
    a(f"buffer_load_dwordx2 {vr(R,2)}, v{T+1}, s[12:15], 0 offen")
    for i in range(4): a(f"buffer_load_dwordx2 {vr(R+2+2*i,2)}, v{T}, s[12:15], 0 offen offset:{1280*i}")
    for i in range(4): a(f"buffer_load_dwordx4 v{T+2}, s[8:11], s{sT} offen offset:{1024*i} lds")
    a(f"""
    s_add_u32 m0, m0, 4096
    s_mov_b64 exec, 15
    buffer_load_dwordx4 v{T+2}, s[8:11], s{sT+1} offen lds
    s_mov_b64 exec, -1
    s_mul_i32 s{sT}, s{sW}, {UST}
    s_add_u32 s{sT}, s{sT}, {UB + 4096}
    v_lshl_add_u32 v{T+3}, v{LN}, 3, s{sT}
    v_mov_b32 v{T+4}, 0
    v_mov_b32 v{T+5}, 0
    ds_write_b64 v{T+3}, {vr(T+4,2)}
    v_lshlrev_b32 v{T+3}, 3, v0
    v_sub_u32 v{T+3}, {UB + 2*2044}, v{T+3}
    s_mov_b32 s20, 0x05040100
    s_mov_b32 s21, 0x07060302
    v_and_b32 v{T+4}, 15, v{LN}
    v_lshrrev_b32 v{T+5}, 4, v{LN}
    v_and_b32 v{T+6}, 1, v{LN}
    v_lshrrev_b32 v{T+7}, 1, v{T+4}
    s_mul_i32 s{sT}, s{sW}, {2*KT_STRIDE}
    s_add_u32 s{sT}, s{sT}, {56 + KT_STRIDE}
    v_lshl_add_u32 v{aT[0]}, v{T+7}, 3, s{sT}
    v_lshlrev_b32 v{T+4}, 4, v{T+5}
    v_sub_u32 v{aT[0]}, v{aT[0]}, v{T+4}
    v_mul_u32_u24 v{aB}, {KT_STRIDE}, v{T+6}
    v_sub_u32 v{aT[0]}, v{aT[0]}, v{aB}
    v_add_u32 v{aT[1]}, 2048, v{aT[0]}
    s_mul_i32 s{sT}, s{sW}, {2*UST}
    s_add_u32 s{sT}, s{sT}, {UB + 496}
    v_mul_u32_u24 v{aB}, {UST}, v{T+6}
    v_add_u32 v{aB}, s{sT}, v{aB}
    v_sub_u32 v{aB}, v{aB}, v{T+4}
    v_lshlrev_b32 v{T+4}, 6, v{T+7}
    v_sub_u32 v{aB}, v{aB}, v{T+4}
    v_lshl_add_u32 v{T+4}, v{T+7}, 5, v{T+6}
    v_lshl_add_u32 v{T+4}, v{T+5}, 3, v{T+4}
    v_mul_u32_u24 v7, 2560, v{T+4}
    s_waitcnt vmcnt(5)
    """)
    row = lambda i, d: R + 2*(i+1) + d
    for c in range(4):
        d = c >> 1; sel = 20 + (c & 1); o = TF + 4*c
        a(f"v_perm_b32 v{o}, v{row(1,d)}, v{row(2,d)}, s{sel}")
        a(f"v_perm_b32 v{o+1}, v{row(-1,d)}, v{row(0,d)}, s{sel}")
        a(f"v_perm_b32 v{o+2}, v{row(2,d)}, v{row(3,d)}, s{sel}")
        a(f"v_perm_b32 v{o+3}, v{row(0,d)}, v{row(1,d)}, s{sel}")
        a(f"ds_write_b64 v{T+3}, {vr(o,2)} offset:{2*c*UST}")
        a(f"ds_write_b64 v{T+3}, {vr(o+2,2)} offset:{(2*c+1)*UST}")
    a(f"""
    s_waitcnt vmcnt(0) lgkmcnt(0)
    s_barrier
    s_cmp_ge_u32 s{sW}, 4
    s_cbranch_scc1 C_exit
    s_mov_b32 s22, 0
    """)
    for r in range(32): a(f"v_mov_b32 v{Y+r}, 0")
    prof_mark(a, 0)
    a.label("C_loop")
    def rdT(i): a(f"ds_read2_b64 {vr(TF+4*i,4)}, v{aT[i>>2]} offset0:{64*(i&3)} offset1:{64*(i&3)+1}")
    def rdB(b): a(f"ds_read_b128 {vr(BF+4*b,4)}, v{aB} offset:{512*(7-b)}")
    for i in range(8): rdB(7-i); rdT(i)
    a(f"""
    v_add_u32 v{aT[0]}, 64, v{aT[0]}
    v_add_u32 v{aT[1]}, 64, v{aT[1]}
    v_add_u32 v{aB}, 64, v{aB}
    s_add_u32 s22, s22, 1
    s_cmp_lg_u32 s22, 8
    """)
    for i in range(8):
        b = 7 - i
        if i % 2 == 0: a(f"s_waitcnt lgkmcnt({12-2*i})")
        for t in range(i + 1):
            c = t + b
            a(f"v_mfma_f32_16x16x32_bf16 {vr(Y+4*c,4)}, {vr(TF+4*t,4)}, {vr(BF+4*b,4)}, {vr(Y+4*c,4)}")
    a("s_cbranch_scc1 C_loop")
    prof_mark(a, 1)
    a(f"""
    s_mul_i32 s{sT}, s{sW}, {2*KT_STRIDE}
    v_add_u32 v{T}, s{sT}, v{T+2}
    s_lshl_b32 s{sT}, s{sW}, 10
    v_add_u32 v{T+1}, s{sT}, v{T+2}
    s_mul_i32 s{sT}, s{sW}, {512*2560}
    s_lshl_b32 s{sT+1}, s{sG}, 3
    s_add_u32 s{sT}, s{sT}, s{sT+1}
    s_add_u32 s{sT}, s{sT}, 1280
    """)
    srd(a, 12, 28, 2048*2560)
    for cp in range(4):
        for k in range(4): a(f"v_cvt_pk_bf16_f32 v{TF+4*cp+k}, v{Y+8*cp+2*k}, v{Y+8*cp+2*k+1}")
        a(f"ds_write_b128 v{T}, {vr(TF+4*cp,4)} offset:{1024*cp}")
    a("s_waitcnt lgkmcnt(0)\n s_barrier")
    for c in range(4): a(f"ds_read_b128 {vr(BF+4*c,4)}, v{T+1} offset:{2*KT_STRIDE*c}")
    a("s_waitcnt lgkmcnt(0)")
    for k in range(4):
        for h in range(2):
            o = Y + 4*k + 2*h
            a(f"v_perm_b32 v{o}, v{BF+4+k}, v{BF+k}, s{20+h}")
            a(f"v_perm_b32 v{o+1}, v{BF+12+k}, v{BF+8+k}, s{20+h}")
            a(f"s_add_u32 s{sT+1}, s{sT}, {(256*(k>>1) + 2*(2*(k&1)+h))*2560}")
            a(f"buffer_store_dwordx2 {vr(o,2)}, v7, s[12:15], s{sT+1} offen")
    prof_end(a, 1)
    a.label("C_exit")
    a("s_endpgm")

NCONV = 160
def k2(a):
    prof_start(a)
    a("s_load_dwordx2 s[4:5], s[0:1], 112")
    a("s_cmp_ge_u32 s2, 256")
    a("s_cbranch_scc1 C_entry")
    if "noattn" in sys.argv: a("s_endpgm")
    attn(a)
    a.label("C_entry")
    a(f"s_cmp_ge_u32 s2, {256 + NCONV}")
    a("s_cbranch_scc1 C_exit")
    if "noconv" in sys.argv: a("s_endpgm")
    conv(a)

NL3 = int(ARG("nl3", 2))
CHK3 = [int(x) for x in ARG("chk3", "4,4,4,4,2,2").split(",")]
def k3(a):
    LN = 2; sW = 16; sTb = 17; sCb = 18; sT = 20; sO = 24
    prof_start(a)
    a(f"""
    s_load_dwordx2 s[4:5], s[0:1], 112
    s_load_dwordx2 s[6:7], s[0:1], 96
    s_cmp_ge_u32 s2, 256
    s_cbranch_scc1 P_exit
    v_lshrrev_b32 v1, 6, v0
    v_and_b32 v{LN}, 63, v0
    s_lshr_b32 s{sT}, s2, 3
    v_readfirstlane_b32 s{sW}, v1
    s_bfe_u32 s{sTb}, s2, 0x20001
    s_lshl_b32 s{sTb}, s{sTb}, 3
    s_and_b32 s{sT+1}, s{sT}, 7
    s_add_u32 s{sTb}, s{sTb}, s{sT+1}
    s_and_b32 s{sCb}, s2, 1
    s_lshl_b32 s{sCb}, s{sCb}, 2
    s_lshr_b32 s{sT}, s{sT}, 3
    s_add_u32 s{sCb}, s{sCb}, s{sT}
    v_lshlrev_b32 v3, 4, v{LN}
    s_cmp_lt_u32 s{sW}, {NL3}
    s_cbranch_scc1 P_load
    s_sub_u32 s{sW}, s{sW}, {NL3}
    s_lshl_b32 s{sT}, s{sTb}, 1
    s_lshr_b32 s{sT+1}, s{sW}, 1
    s_add_u32 s{sT}, s{sT}, s{sT+1}
    s_mul_i32 s{sO}, s{sT}, 40960
    s_and_b32 s{sT+1}, s{sW}, 1
    s_lshl_b32 s{sT+1}, s{sT+1}, 8
    s_add_u32 s{sO}, s{sO}, s{sT+1}
    s_add_u32 s{sO}, s{sO}, {WS_O}
    v_and_b32 v4, 15, v{LN}
    v_lshrrev_b32 v5, 4, v{LN}
    v_lshlrev_b32 v6, 4, v4
    v_lshl_add_u32 v6, v5, 9, v6
    s_waitcnt lgkmcnt(0)
    """)
    srd(a, 8, 4, WS_END)
    OF = 48; WF = 128; ACC = 16
    NWB = 10
    def ldo(ks):
        if ks % 2 == 0 and ks: a(f"s_add_u32 s{sO}, s{sO}, 4096")
        a(f"buffer_load_dwordx4 {vr(OF+4*ks,4)}, v6, s[8:11], s{sO} offen offset:{2048*(ks&1)}")
    PF = int(ARG("pf3", 8))
    for ks in range(PF): ldo(ks)
    issued = PF
    a(f"""
    v_add_u32 v7, 0x10000, v3
    s_lshl_b32 s{sT}, s{sTb}, 6
    s_lshl_b32 s{sT+1}, s{sW}, 4
    s_add_u32 s{sT}, s{sT}, s{sT+1}
    s_mul_i32 s{sT}, s{sT}, 2560
    s_mul_i32 s{sT+1}, s{sCb}, 160
    s_add_u32 s{sT}, s{sT}, s{sT+1}
    v_mul_u32_u24 v4, 2560, v4
    v_lshl_add_u32 v8, v5, 4, v4
    v_lshl_add_u32 v9, v5, 3, v4
    """)
    srd(a, 12, 6, 2048*2560)
    ks0 = 0
    for ci, n in enumerate(CHK3):
        a("s_barrier")
        if ci == 0: prof_mark(a, 0)
        fr = [(ks, j) for ks in range(ks0, ks0 + n) for j in range(5)]
        def rd(i):
            ks, j = fr[i]; off = ks*5120 + j*1024
            a(f"ds_read_b128 {vr(WF+4*(i%NWB),4)}, v{7 if off >= 65536 else 3} offset:{off & 0xffff}")
        for i in range(min(NWB, len(fr))): rd(i)
        k = min(20, issued + n)
        while issued < k: ldo(issued); issued += 1
        nrd = min(NWB, len(fr))
        for i, (ks, j) in enumerate(fr):
            w = f"lgkmcnt({nrd - i - 1})"
            if j == 0: w = f"vmcnt({issued - ks - 1}) " + w
            a(f"s_waitcnt {w}")
            acc = vr(ACC+4*j, 4)
            a(f"v_mfma_f32_16x16x32_bf16 {acc}, {vr(WF+4*(i%NWB),4)}, {vr(OF+4*ks,4)}, {'0' if ks == 0 else acc}")
            if nrd < len(fr): rd(nrd); nrd += 1
        ks0 += n
    assert ks0 == 20
    prof_mark(a, 1)
    for r in range(10): a(f"v_cvt_pk_bf16_f32 v{36+r}, v{ACC+2*r}, v{ACC+2*r+1}")
    a(f"""
    buffer_store_dwordx4 v[36:39], v8, s[12:15], s{sT} offen
    buffer_store_dwordx4 v[40:43], v8, s[12:15], s{sT} offen offset:64
    buffer_store_dwordx2 v[44:45], v9, s[12:15], s{sT} offen offset:128
    """)
    prof_end(a, 2)
    a.label("P_exit")
    a("s_endpgm")
    a.label("P_load")
    a(f"""
    s_mul_i32 s{sO}, s{sCb}, 102400
    s_lshl_b32 s{sT}, s{sW}, 10
    s_add_u32 s{sO}, s{sO}, s{sT}
    s_add_u32 s{sO}, s{sO}, {WS_WO}
    s_mov_b32 m0, s{sT}
    s_waitcnt lgkmcnt(0)
    """)
    srd(a, 8, 4, WS_END)
    cnt = []; tot = 0
    for n in CHK3:
        tot += 5*n; cnt.append(-(-tot // NL3))
    st = {"q": 0}
    per = max(1, 4 // NL3)
    def issue(upto):
        while st["q"] < upto:
            q = st["q"]
            if q % per == 0 and q:
                a(f"s_add_u32 m0, m0, {per*NL3*1024}")
                a(f"s_add_u32 s{sO}, s{sO}, {per*NL3*1024}")
            a(f"buffer_load_dwordx4 v3, s[8:11], s{sO} offen offset:{(q%per)*NL3*1024} lds")
            st["q"] += 1
    AH = int(ARG("ah3", 2))
    issue(cnt[min(AH, len(cnt)-1)])
    for ci in range(len(CHK3)):
        a(f"s_waitcnt vmcnt({st['q'] - cnt[ci]})")
        a("s_barrier")
        issue(cnt[min(ci + 1 + AH, len(cnt)-1)])
    prof_end(a, 2)
    a("s_endpgm")

KERNELS = [
    ("k1_kernel", k1, 256, 512, 135168, 168),
    ("k2_kernel", k2, 256 + NCONV, 512, 81920, 128),
    ("k3_kernel", k3, 256, 64*(NL3+4), 102400 + 4096, 168),
]

STMOD = {'k1': '', 'k2': '', 'k3': ''}
def build(kernels, verbose=False):
    hdr = ["; generated by dev/gen.py"]
    for (lab, fn, g, b, lds, vg) in kernels:
        hdr.append(f"; @launch kernel={lab} grid=({g},1,1) block=({b},1,1) lds={lds}")
    out = "\n".join(hdr) + '\n.amdgcn_target "amdgcn-amd-amdhsa--gfx950"\n.text\n'
    desc = '.section .rodata,"a"\n'
    for (lab, fn, g, b, lds, vg) in kernels:
        a = Asm(); fn(a)
        stm = ARG("st" + lab[1], STMOD[lab[:2]]).replace("+", " ")
        if stm: a.lines = [(l + " " + stm if l.startswith("buffer_store") and "s[80:83]" not in l else l) for l in a.lines]
        a.fix(verbose)
        errs = a.check_waits()
        print(f"{lab}: {sum(1 for x in a.ins if x.states)} instrs, nop states inserted {a.nop_states}", file=sys.stderr)
        for e in errs[:12]: print("   WAIT:", e, file=sys.stderr)
        out += f".globl {lab}\n.p2align 8\n.type {lab},@function\n{lab}:\n" + a.text()
        desc += f""".p2align 6
.amdhsa_kernel {lab}
  .amdhsa_next_free_vgpr {vg}
  .amdhsa_next_free_sgpr 102
  .amdhsa_accum_offset {min(vg,256)}
  .amdhsa_group_segment_fixed_size 0
  .amdhsa_kernarg_size 120
  .amdhsa_user_sgpr_count 2
  .amdhsa_user_sgpr_kernarg_segment_ptr 1
  .amdhsa_system_sgpr_workgroup_id_x 1
.end_amdhsa_kernel
"""
    return out + desc

if __name__ == "__main__":
    dst = sys.argv[1] if len(sys.argv) > 1 else f"cdna_kernels/{NAME}.s"
    only = [x[5:] for x in sys.argv if x.startswith("only=")]
    ks = [k for k in KERNELS if not only or k[0][:2] in only[0].split(",")]
    open(dst, "w").write(build(ks, verbose="-v" in sys.argv))
```
